```python
import torch

def _softmax(x, axis=-1):
    return torch.softmax(x, dim=axis)
def _gelu(x):
    return torch.nn.functional.gelu(x, approximate="tanh")
def _silu(x):
    return torch.nn.functional.silu(x)
def _sigmoid(x):
    return torch.sigmoid(x)
def _layernorm(x, axis=-1, eps=1e-5):
    m = x.mean(dim=axis, keepdim=True)
    v = x.var(dim=axis, keepdim=True, unbiased=False)
    return (x - m) / torch.sqrt(v + eps)
def _scatter_add(tgt, idx, src, axis=0):
    return tgt.clone().index_add_(axis, idx, src)
def _segment_sum(src, seg, n):
    out = torch.zeros((n,) + src.shape[1:], dtype=src.dtype)
    return out.index_add_(0, seg, src)
def _pad(x, pw):
    flat = tuple(v for pair in reversed(pw) for v in pair)
    return torch.nn.functional.pad(x, flat)

kernel_name = 'concat_heads__linear_kernel_hedgehog__ssm_conv_s4__prompt'

def setup_inputs():

    _w = (lambda a: (lambda t: t.to(torch.bfloat16) if t.is_floating_point() else t)(torch.as_tensor(a)))
    def _A_setup():
        B, S, D, H = 1, 2048, 640, 32
        Dh = D // H
        return {
            "x": _w((lambda *s: torch.randn(*s, dtype=torch.bfloat16) * 0.4)(B, S, D)),
            "wqkv": _w((lambda *s: torch.randn(*s, dtype=torch.bfloat16) * 0.4)(D, 3 * D)),
            "w_phi": _w((lambda *s: torch.randn(*s, dtype=torch.bfloat16) * 0.4)(H, Dh, Dh) * (Dh ** -0.5)),
            "wo": _w((lambda *s: torch.randn(*s, dtype=torch.bfloat16) * 0.05)(D, D)),
        }
    _A_in = _A_setup()

    def _B_setup():
        B, L, D, N = 1, 2048, 640, 128
        A_re = -(lambda _x: torch.exp(torch.as_tensor(_x)))((lambda *s: torch.randn(*s, dtype=torch.bfloat16) * 3.2)(D, N))
        A_im = torch.pi * (lambda *s: torch.randn(*s, dtype=torch.bfloat16) * 0.2)(D, N)
        B_re = (lambda *s: torch.randn(*s, dtype=torch.bfloat16) * 0.4)(D, N)
        B_im = (lambda *s: torch.randn(*s, dtype=torch.bfloat16) * 0.4)(D, N)
        C_re = (lambda *s: torch.randn(*s, dtype=torch.bfloat16) * 0.4)(D, N)
        C_im = (lambda *s: torch.randn(*s, dtype=torch.bfloat16) * 0.4)(D, N)
        log_dt = (lambda *s: torch.randn(*s, dtype=torch.bfloat16) * 0.2)(D) * 0.5 - 4.0
        Dskip = (lambda *s: torch.randn(*s, dtype=torch.bfloat16) * 0.4)(D)
        return {
            "u": _w((lambda *s: torch.randn(*s, dtype=torch.bfloat16) * 0.05)(B, L, D)),
            "A_re": _w(A_re),
            "A_im": _w(A_im),
            "B_re": _w(B_re),
            "B_im": _w(B_im),
            "C_re": _w(C_re),
            "C_im": _w(C_im),
            "log_dt": _w(log_dt),
            "Dskip": _w(Dskip),
        }
    _B_in = _B_setup()

    return {
        "A_x": _A_in["x"],
        "A_wqkv": _A_in["wqkv"],
        "A_w_phi": _A_in["w_phi"],
        "A_wo": _A_in["wo"],
        "B_u": _B_in["u"],
        "B_A_re": _B_in["A_re"],
        "B_A_im": _B_in["A_im"],
        "B_B_re": _B_in["B_re"],
        "B_B_im": _B_in["B_im"],
        "B_C_re": _B_in["C_re"],
        "B_C_im": _B_in["C_im"],
        "B_log_dt": _B_in["log_dt"],
        "B_Dskip": _B_in["Dskip"],
    }

def reference(A_x, A_wqkv, A_w_phi, A_wo, B_u, B_A_re, B_A_im, B_B_re, B_B_im, B_C_re, B_C_im, B_log_dt, B_Dskip):
    def _A_ref(x, wqkv, w_phi, wo):
        B, S, D = x.shape
        H = 32; Dh = D // H
        qkv = (lambda x, *d: x.permute(*d))((x @ wqkv).reshape(B, S, 3, H, Dh), 2, 0, 3, 1, 4)
        q, k, v = qkv[0], qkv[1], qkv[2]
        pq = torch.einsum("bhsd,hdf->bhsf", q, w_phi)
        pk = torch.einsum("bhsd,hdf->bhsf", k, w_phi)
        phi_q = torch.concatenate([_softmax(pq, axis=-1), _softmax(-pq, axis=-1)], axis=-1)
        phi_k = torch.concatenate([_softmax(pk, axis=-1), _softmax(-pk, axis=-1)], axis=-1)
        kv = torch.einsum("bhsf,bhsd->bhfd", phi_k, v)
        z  = torch.einsum("bhsf->bhf", phi_k)
        num = torch.einsum("bhqf,bhfd->bhqd", phi_q, kv)
        den = torch.einsum("bhqf,bhf->bhq", phi_q, z)[..., None] + 1e-6
        o = num / den
        return (lambda x, *d: x.permute(*d))(o, 0, 2, 1, 3).reshape(B, S, D) @ wo

    def _B_ref(u, A_re, A_im, B_re, B_im, C_re, C_im, log_dt, Dskip):
        Bsz, L, D = u.shape
        dt = torch.exp(log_dt)[:, None]
        A = A_re + 1j * A_im
        Bc = B_re + 1j * B_im
        Cc = C_re + 1j * C_im
        logdA = dt * A
        dB = dt * Bc
        l = (lambda x, dt: x.to(dt))(torch.arange(L), A_re.dtype)
        P = torch.exp(logdA[:, :, None] * l[None, None, :])
        K = torch.einsum("dn,dnl,dn->dl", Cc, P, dB).real
        L2 = 2 * L
        Kp = _pad(K, ((0, 0), (0, L)))
        up = (lambda x, *d: x.permute(*d))(u, 0, 2, 1)
        up = _pad(up, ((0, 0), (0, 0), (0, L)))
        Kf = (lambda x, axes=(-2,-1): torch.fft.rfft2(x.float(), dim=axes))(Kp[:, None, :], axes=(-2, -1))
        Uf = (lambda x, axes=(-2,-1): torch.fft.rfft2(x.float(), dim=axes))(up[:, :, None, :], axes=(-2, -1))
        Yf = Uf * Kf[None, :, :, :]
        y = (lambda x, s, axes=(-2,-1): torch.fft.irfft2(x, s=s, dim=axes).to(torch.bfloat16))(Yf, (1, L2), axes=(-2, -1))[:, :, 0, :L]
        y = (lambda x, *d: x.permute(*d))(y, 0, 2, 1) + u * Dskip[None, None, :]
        return y

    a = _A_ref(A_x, A_wqkv, A_w_phi, A_wo)
    b = _B_ref(B_u, B_A_re, B_A_im, B_B_re, B_B_im, B_C_re, B_C_im, B_log_dt, B_Dskip)
    return torch.concatenate([a, b], axis=-1)
```

```python
from gen import *
WS_PHIQ = 0
WS_KVP  = 0x500000
WS_UT   = 0x6C0000
WS_KR   = 0x940000
WS_O    = 0xE40000
WS_YT   = 0x10C0000
WS_WOP  = 0x1340000
WS_END  = 0x1410000
LOG2E = 0x3fb8aa3b
INV2PI = 0x3e22f983
P_X, P_W, P_PHI, P_WO, P_U, P_ARE, P_AIM, P_BRE, P_BIM, P_CRE, P_CIM, P_LDT, P_DSK, P_OUT, P_DBG, P_WS = [16 + 2 * i for i in range(16)]

def load_ptrs(k):
    k('s_load_dwordx16 s[16:31], s[0:1], 0\ns_load_dwordx16 s[32:47], s[0:1], 64')

def srd(k, d, p, nbytes, off=None, off2=None):
    if off is None:
        k(f's_mov_b32 s{d}, s{p}\ns_mov_b32 s{d+1}, s{p+1}')
    else:
        k(f's_add_u32 s{d}, s{p}, {off}\ns_addc_u32 s{d+1}, s{p+1}, 0')
    if off2 is not None:
        k(f's_add_u32 s{d}, s{d}, {off2}\ns_addc_u32 s{d+1}, s{d+1}, 0')
    k(f's_mov_b32 s{d+2}, {nbytes}\ns_mov_b32 s{d+3}, 0x20000')

def divmod_const(k, q, r, x, c, maxv):
    sh = 16
    m = (1 << sh) // c + 1
    assert all((v * m) >> sh == v // c for v in range(maxv)) and m * maxv < (1 << 32) and m < (1 << 24)
    k(f'v_mul_u32_u24 {q}, {m}, {x}\nv_lshrrev_b32 {q}, {sh}, {q}\nv_mul_u32_u24 {r}, {c}, {q}\nv_sub_u32 {r}, {x}, {r}')

def sdivmod_const(k, q, r, x, c, maxv):
    sh = 16
    m = (1 << sh) // c + 1
    assert all((v * m) >> sh == v // c for v in range(maxv))
    k(f's_mul_i32 {q}, {x}, {m}\ns_lshr_b32 {q}, {q}, {sh}\ns_mul_i32 {r}, {q}, {c}\ns_sub_u32 {r}, {x}, {r}')

WS_DBG = 0x1800000
import os
STAMPS = bool(int(os.environ.get('STAMPS', '0')))
def stamp(k, i):
    if STAMPS: k(f's_memrealtime s[{76+2*i}:{77+2*i}]')
def stamp_init(k, woff=0):
    if STAMPS:
        k('s_lshl_b32 s74, s2, 4\ns_add_u32 s74, s74, s3\ns_lshl_b32 s74, s74, 6\ns_add_u32 s74, s74, %d' % (WS_DBG + woff))
        for i in range(1, 12): k(f's_mov_b32 s{76+2*i}, 0')
def endpgm(k):
    if STAMPS:
        k('s_waitcnt vmcnt(0)')
        stamp(k, 11)
        k('v_mbcnt_lo_u32_b32 v0, -1, 0\nv_and_b32 v0, 15, v0\nv_lshlrev_b32 v0, 2, v0\nv_add_u32 v0, s74, v0\nv_add_u32 v0, 0x400000, v0\ns_mov_b64 exec, 0xffff')
        k(f'global_store_dword v0, v2, s[{P_WS}:{P_WS+1}]')
        k('s_waitcnt lgkmcnt(0)\nv_mov_b32 v0, s74')
        for i in range(12):
            k(f'v_mov_b32 v1, s{76+2*i}\nglobal_store_dword v0, v1, s[{P_WS}:{P_WS+1}] offset:{4*i}')
    k('s_endpgm')

def lstamp(k, sidx):
    if STAMPS: k(f's_memrealtime s[72:73]\ns_waitcnt lgkmcnt(0)\ns_mov_b32 m0, {sidx}\nv_writelane_b32 v2, s72, m0')
```

```python
import re

VCC = [('s', 106), ('s', 107)]
EXEC = [('s', 126), ('s', 127)]
M0 = [('s', 124)]
SCC = [('scc', 0)]

_reg_re = re.compile(r'^(-|\|)?(abs\()?([vas])(\d+|\[(\d+):(\d+)\])\)?\|?$')

def regs_of(tok):
    tok = tok.strip()
    if tok in ('vcc',): return list(VCC)
    if tok == 'vcc_lo': return [VCC[0]]
    if tok == 'vcc_hi': return [VCC[1]]
    if tok == 'exec': return list(EXEC)
    if tok == 'exec_lo': return [EXEC[0]]
    if tok == 'exec_hi': return [EXEC[1]]
    if tok == 'm0': return list(M0)
    m = _reg_re.match(tok)
    if not m: return []
    c = m.group(3)
    if m.group(5) is not None:
        return [(c, i) for i in range(int(m.group(5)), int(m.group(6)) + 1)]
    return [(c, int(m.group(4)))]

TRANS = ('v_exp_f32', 'v_log_f32', 'v_rcp_f32', 'v_rsq_f32', 'v_sqrt_f32', 'v_sin_f32', 'v_cos_f32',
         'v_rcp_iflag_f32', 'v_exp_f16', 'v_rcp_f16')

class Inst:
    def __init__(self, text):
        self.text = text
        self.label = None
        self.target = None
        body = text.split(';')[0].strip()
        if body.endswith(':'):
            self.label = body[:-1]; self.op = 'label'; self.kind = 'label'
            self.defs = []; self.uses = []; return
        if body == '' or body.startswith('.'):
            self.op = 'dir'; self.kind = 'dir'; self.defs = []; self.uses = []; return
        parts = body.split(None, 1)
        op = parts[0]
        for suf in ('_e32', '_e64', '_dpp', '_sdwa'):
            if op.endswith(suf): op = op[:-len(suf)]
        self.op = op
        rest = parts[1] if len(parts) > 1 else ''
        ops = [o.strip() for o in rest.split(',')] if rest else []
        mods = []
        if ops:
            m = re.search(r'\s(op_sel|neg_lo|neg_hi|op_sel_hi|quad_perm|row_|offset|offen|idxen|sc0|sc1|nt|lds|clamp|mul:|div:|bank_mask|bound_ctrl|dst_sel|src0_sel|src1_sel|glc|cbsz|abid|blgp|wave_)', ' ' + rest)
            if m:
                mods = (' ' + rest)[m.start():].split()
                rest2 = (' ' + rest)[:m.start()]
                ops = [o.strip() for o in rest2.split(',')]
        self.ops = ops; self.mods = mods
        R = [regs_of(o) for o in ops]
        self.dpp = any(x.startswith(('row_', 'quad_perm', 'wave_')) for x in mods)
        self.opsel = any(x.startswith(('dst_sel',)) for x in mods) or (any(x.startswith('op_sel:') for x in mods) and not op.startswith('v_pk_') and not op.startswith('v_mfma'))
        d, u = [], []
        k = None
        flat = lambda L: [r for x in L for r in x]
        if op.startswith('v_mfma'):
            k = 'mfma'; d = R[0]; u = flat(R[1:]); self.A = R[1]; self.B = R[2]; self.C = R[3]
            self.passes = 8 if '32x32' in op else 4
            if op in ('v_mfma_f32_32x32x2_f32',): self.passes = 16
            if op in ('v_mfma_f32_16x16x4_f32',): self.passes = 8
            assert '_f32_f32' not in op and not op.endswith('x2_f32') and not op.endswith('x4_f32'), 'sgemm rules not coded'
        elif op.startswith('v_'):
            k = 'trans' if op in TRANS else 'valu'
            if op.startswith('v_cmpx'):
                d = R[0] + EXEC; u = flat(R[1:])
            elif op.startswith('v_cmp'):
                d = R[0]; u = flat(R[1:])
            elif '_co_' in op or op.startswith('v_div_scale') or op.startswith('v_mad_u64'):
                d = R[0] + R[1]; u = flat(R[2:])
            elif op.startswith('v_permlane') and 'swap' in op or op == 'v_swap_b32':
                d = R[0] + R[1]; u = R[0] + R[1]
            elif op == 'v_nop':
                pass
            else:
                d = R[0]; u = flat(R[1:])
                if op.startswith(('v_fmac', 'v_pk_fmac', 'v_dot2c', 'v_writelane')) or self.dpp or self.opsel:
                    u = u + R[0]
                if op == 'v_div_fmas_f32': u = u + VCC
        elif op.startswith('ds_'):
            if op.startswith(('ds_read', 'ds_bpermute', 'ds_permute', 'ds_swizzle')) or '_rtn' in op:
                k = 'ds_read'; d = R[0]; u = flat(R[1:])
                if 'd16' in op: u = u + R[0]
            else:
                k = 'ds_write'; u = flat(R)
        elif op.startswith(('buffer_', 'global_')):
            if op in ('buffer_wbl2', 'buffer_inv'):
                k = 'vmem_store'
            elif 'lds' in mods or '_lds_' in op:
                k = 'lds_dma'; u = flat(R) + M0
            elif '_load' in op:
                k = 'vmem_load'; d = R[0]; u = flat(R[1:])
                if 'd16' in op: u = u + R[0]
            elif '_atomic' in op:
                if 'sc0' in mods:
                    k = 'vmem_load'; d = R[0]; u = flat(R) if op.startswith('buffer_') else flat(R[1:])
                else:
                    k = 'vmem_store'; u = flat(R)
            else:
                k = 'vmem_store'; u = flat(R)
            self.wide = ('x3' in op or 'x4' in op) and k == 'vmem_store'
            if k == 'vmem_store' and R:
                self.data = R[0] if op.startswith('buffer_') else R[1]
        elif op.startswith(('s_load', 's_buffer_load', 's_memtime', 's_memrealtime', 's_atomic')):
            k = 'smem'; d = R[0]; u = flat(R[1:])
        elif op == 's_waitcnt':
            k = 'waitcnt'
            m = re.search(r'vmcnt\((\d+)\)', rest); self.vm = int(m.group(1)) if m else None
            m = re.search(r'lgkmcnt\((\d+)\)', rest); self.lg = int(m.group(1)) if m else None
        elif op == 's_nop':
            k = 'nop'; self.n = int(ops[0], 0) + 1
        elif op.startswith('s_cbranch') or op == 's_branch':
            k = 'branch'; self.target = ops[0]
            if 'scc' in op: u = SCC
            if 'vcc' in op: u = VCC
            if 'exec' in op: u = EXEC
        elif op == 's_endpgm':
            k = 'end'
        elif op in ('s_barrier', 's_sleep', 's_setprio', 's_sendmsg'):
            k = 'sctl'
        elif op.startswith('s_'):
            k = 'salu'
            if op.startswith(('s_cmp', 's_bitcmp')):
                d = SCC; u = flat(R)
            elif 'saveexec' in op:
                d = R[0] + EXEC + SCC; u = flat(R[1:]) + EXEC
            else:
                d = R[0] + SCC; u = flat(R[1:])
                if op.startswith(('s_addk', 's_mulk', 's_cmov')): u = u + R[0]
        else:
            raise ValueError('unknown instruction: ' + text)
        self.kind = k; self.defs = d; self.uses = u

    def states(self):
        if self.kind in ('label', 'dir'): return 0
        if self.kind == 'nop': return self.n
        return 1

def _ov(a, b):
    return bool(set(a) & set(b))

def required(p, c):
    req = 0
    pv = p.kind in ('valu', 'trans')
    cv = c.kind in ('valu', 'trans')
    cmem = c.kind in ('vmem_load', 'vmem_store', 'lds_dma', 'ds_read', 'ds_write')
    cvmem = c.kind in ('vmem_load', 'vmem_store', 'lds_dma')
    if pv:
        pvd = [r for r in p.defs if r[0] in 'va']
        psd = [r for r in p.defs if r[0] == 's']
        if c.kind == 'mfma' and _ov(pvd, c.uses): req = max(req, 2)
        if c.kind == 'mfma' and _ov(psd, EXEC): req = max(req, 4)
        if cvmem and _ov(psd, c.uses): req = max(req, 5)
        if cv and _ov(psd, c.uses):
            req = max(req, 2)
            if c.op in ('v_readlane_b32', 'v_writelane_b32', 'v_div_fmas_f32'): req = max(req, 4)
        if cv and _ov(psd, EXEC):
            if c.dpp: req = max(req, 5)
            if c.op.startswith(('v_readlane', 'v_readfirstlane', 'v_writelane', 'v_permlane')): req = max(req, 4)
        if cv and c.dpp and _ov(pvd, c.uses): req = max(req, 2)
        if cv and c.op in ('v_readlane_b32', 'v_readfirstlane_b32') and _ov(pvd, c.uses): req = max(req, 1)
        if cv and c.op.startswith('v_permlane') and _ov(pvd, c.uses): req = max(req, 2)
        if p.kind == 'trans' and (c.kind in ('valu', 'mfma') or cmem) and _ov(pvd, c.uses): req = max(req, 1)
        if p.opsel and cv and _ov(pvd, c.uses + c.defs): req = max(req, 1)
        if c.kind in ('salu', 'branch', 'smem') and _ov(psd, c.uses): req = max(req, 1)
    if p.kind == 'salu' and _ov(p.defs, M0) and (c.kind == 'lds_dma' or 'addtid' in c.op): req = max(req, 1)
    if p.kind == 'salu' and _ov(p.defs, EXEC) and c.kind == 'mfma': req = max(req, 1)
    if p.kind == 'vmem_store' and getattr(p, 'wide', False) and _ov(p.data, c.defs):
        req = max(req, 2 if (cv or c.kind == 'mfma') else 1)
    if p.kind == 'mfma':
        n = p.passes
        big = {2: 5, 4: 8, 8: 12, 16: 20}[n]
        if c.kind == 'mfma':
            if _ov(p.defs, c.A + c.B): req = max(req, big)
            if _ov(p.defs, c.C) or _ov(p.defs, c.defs):
                if p.defs == c.C and p.passes == c.passes and (c.defs == c.C or not _ov(p.defs, c.defs)): pass
                else: req = max(req, {2: 4, 4: 6, 8: 10, 16: 18}[n])
        elif (cv or cmem) and _ov(p.defs, c.uses + c.defs):
            req = max(req, big)
        if (cv or c.kind in ('ds_read', 'vmem_load')) and _ov(p.C, c.defs):
            req = max(req, {2: 1, 4: 3, 8: 7, 16: 15}[n])
    return req

class Kernel:
    def __init__(self, name):
        self.name = name; self.ins = []; self.nlab = 0
    def __call__(self, text):
        for line in text.split('\n'):
            line = line.strip()
            if line and not line.startswith(';'):
                self.ins.append(Inst(line))
    def newlabel(self, base='L'):
        self.nlab += 1
        return f'{self.name}_{base}{self.nlab}'

    def _cfg(self, ins):
        lab = {x.label: i for i, x in enumerate(ins) if x.label}
        succ = [[] for _ in ins]
        for i, x in enumerate(ins):
            if x.kind == 'end': continue
            if x.kind == 'branch':
                succ[i].append(lab[x.target])
                if x.op == 's_branch': continue
            if i + 1 < len(ins): succ[i].append(i + 1)
        return succ

    def insert_waits(self):
        ins = self.ins
        succ = self._cfg(ins)
        wv = [None] * len(ins); wl = [None] * len(ins)
        changed = True
        rounds = 0
        while changed:
            changed = False; rounds += 1
            assert rounds < 50
            st = [None] * len(ins)
            st[0] = ({}, {}, False)
            work = [0]
            while work:
                i = work.pop()
                vm, lg, sm = st[i]
                x = ins[i]
                touched = x.uses + x.defs
                nv = min([vm[r] for r in touched if r in vm], default=None)
                nl = min([lg[r] for r in touched if r in lg], default=None)
                if nl is not None and sm: nl = 0
                if nv is not None and nv >= 63: nv = None
                if nl is not None and nl >= 15: nl = 14
                if nv is not None and (wv[i] is None or nv < wv[i]): wv[i] = nv; changed = True
                if nl is not None and (wl[i] is None or nl < wl[i]): wl[i] = nl; changed = True
                a, b = wv[i], wl[i]
                if x.kind == 'waitcnt':
                    a, b = x.vm, x.lg
                if a is not None: vm = {r: g for r, g in vm.items() if g < a}
                if b is not None:
                    if b == 0: lg = {}; sm = False
                    elif not sm: lg = {r: g for r, g in lg.items() if g < b}
                if x.kind in ('vmem_load', 'vmem_store', 'lds_dma'):
                    vm = {r: g + 1 for r, g in vm.items()}
                    for r in x.defs: vm[r] = 0
                elif x.kind in ('ds_read', 'ds_write', 'smem'):
                    lg = {r: g + 1 for r, g in lg.items()}
                    for r in x.defs: lg[r] = 0
                    if x.kind == 'smem': sm = True
                for j in succ[i]:
                    if st[j] is None:
                        st[j] = (vm, lg, sm); work.append(j)
                    else:
                        v0, l0, s0 = st[j]
                        v1 = dict(v0); l1 = dict(l0)
                        for r, g in vm.items(): v1[r] = min(g, v1.get(r, 99))
                        for r, g in lg.items(): l1[r] = min(g, l1.get(r, 99))
                        s1 = s0 or sm
                        if v1 != v0 or l1 != l0 or s1 != s0:
                            st[j] = (v1, l1, s1); work.append(j)
        out = []
        for i, x in enumerate(ins):
            if wv[i] is not None or wl[i] is not None:
                t = 's_waitcnt'
                if wv[i] is not None: t += f' vmcnt({wv[i]})'
                if wl[i] is not None: t += f' lgkmcnt({wl[i]})'
                out.append(Inst(t + ' ; auto'))
            out.append(x)
        self.ins = out

    def insert_nops(self):
        ins = self.ins
        succ = self._cfg(ins)
        pred = [[] for _ in ins]
        for i, s in enumerate(succ):
            for j in s: pred[j].append(i)
        pad = [0] * len(ins)
        for rnd in range(2):
            for i, c in enumerate(ins):
                if c.kind in ('label', 'dir', 'nop', 'waitcnt', 'end', 'sctl'): continue
                need = 0
                stack = [(j, 0) for j in pred[i]]
                seen = {}
                while stack:
                    j, dist = stack.pop()
                    if dist >= 20 or seen.get(j, 99) <= dist: continue
                    seen[j] = dist
                    p = ins[j]
                    if p.kind not in ('label', 'dir', 'nop', 'waitcnt'):
                        need = max(need, required(p, c) - dist)
                    nd = dist + p.states() + pad[j]
                    for q in pred[j]: stack.append((q, nd))
                pad[i] = max(pad[i], need)
        out = []
        for i, x in enumerate(ins):
            n = pad[i]
            while n > 0:
                m = min(n, 16); out.append(Inst(f's_nop {m - 1} ; auto')); n -= m
            out.append(x)
        self.ins = out

    def maxreg(self, c):
        m = -1
        for x in self.ins:
            for r in x.defs + x.uses:
                if r[0] == c and not (c == 's' and r[1] >= 102): m = max(m, r[1])
        return m

    def text(self, extra_kd='', min_vgpr=0):
        self.insert_waits(); self.insert_nops()
        nv = self.maxreg('v') + 1; na = self.maxreg('a') + 1; ns = self.maxreg('s') + 1
        acc = max(4, (nv + 3) // 4 * 4)
        tot = acc + na if na else nv
        tot = max(tot, min_vgpr)
        assert acc <= 256 and tot <= 512 and ns <= 102, (acc, tot, ns)
        code = [f'.globl {self.name}', '.p2align 8', f'.type {self.name},@function', f'{self.name}:']
        for x in self.ins:
            code.append(x.text if x.kind == 'label' else '    ' + x.text)
        kd = f'''.p2align 6
.amdhsa_kernel {self.name}
  .amdhsa_next_free_vgpr {tot}
  .amdhsa_next_free_sgpr {max(ns, 8)}
  .amdhsa_accum_offset {acc}
  .amdhsa_group_segment_fixed_size 0
  .amdhsa_kernarg_size 128
  .amdhsa_user_sgpr_count 2
  .amdhsa_user_sgpr_kernarg_segment_ptr 1
  .amdhsa_system_sgpr_workgroup_id_x 1
{extra_kd}.end_amdhsa_kernel
'''
        self.info = dict(vgpr=nv, agpr=na, sgpr=ns, total=tot, ninst=len(self.ins))
        return '\n'.join(code) + '\n', kd

def module(header, kernels, launches):
    out = [header.rstrip('\n')] if header else []
    for n, g, b, l in launches:
        out.append(f'; @launch kernel={n} grid=({g},1,1) block=({b},1,1) lds={l}')
    out.append('.amdgcn_target "amdgcn-amd-amdhsa--gfx950"')
    out.append('.text')
    kds = []
    for k, e in kernels:
        c, kd = k.text(e)
        out.append(c); kds.append(kd)
    out.append('.section .rodata,"a"')
    out += kds
    return '\n'.join(out)

class Alloc:
    def __init__(self, c, start=0, limit=256):
        self.c = c; self.free = [True] * limit
        for i in range(start): self.free[i] = False
    def get(self, n=1, align=None):
        if align is None: align = 1 if n == 1 else (2 if self.c != 's' or n == 2 else 4)
        for b in range(0, len(self.free) - n + 1, align):
            if all(self.free[b:b + n]):
                for i in range(b, b + n): self.free[i] = False
                return Reg(self.c, b, n)
        raise RuntimeError(f'out of {self.c} regs')
    def put(self, *rs):
        for r in rs:
            for i in range(r.b, r.b + r.n):
                assert not self.free[i]; self.free[i] = True

class Reg:
    def __init__(self, c, b, n): self.c = c; self.b = b; self.n = n
    def __str__(self): return f'{self.c}{self.b}' if self.n == 1 else f'{self.c}[{self.b}:{self.b + self.n - 1}]'
    __repr__ = __str__
    def __getitem__(self, i):
        if isinstance(i, slice):
            a = i.start or 0; e = self.n if i.stop is None else i.stop
            assert 0 <= a < e <= self.n, (a, e, self.n)
            return Reg(self.c, self.b + a, e - a)
        assert 0 <= i < self.n, (i, self.n)
        return Reg(self.c, self.b + i, 1)
    def __format__(self, spec): return str(self)
```

```python
from common import *
STAGE = 36864
NST = 4
L1_WPHI = NST * STAGE
L1_LDS = L1_WPHI + 7168
PH_OFF = 2 * STAGE; PH_STR = 336
V_OFF = PH_OFF + 128 * PH_STR; V_STR = 176
assert V_OFF + 128 * V_STR <= 4 * STAGE
WLDS = L1_LDS // 8 // 64 * 64
TROW = 288

def softmax_phi(k, P, E, T, out, sL):
    mx, mn = T[0], T[1]
    k(f'v_max3_f32 {mx}, {P[0]}, {P[1]}, {P[2]}\nv_min3_f32 {mn}, {P[0]}, {P[1]}, {P[2]}')
    for i in range(3, 19, 2):
        k(f'v_max3_f32 {mx}, {mx}, {P[i]}, {P[i+1]}\nv_min3_f32 {mn}, {mn}, {P[i]}, {P[i+1]}')
    k(f'v_max_f32 {mx}, {mx}, {P[19]}\nv_min_f32 {mn}, {mn}, {P[19]}')
    k(f'v_mul_f32_e64 {mx}, -{mx}, {sL[0]}\nv_mul_f32 {mn}, {sL[0]}, {mn}')
    for i in range(10):
        k(f'v_pk_fma_f32 {E[2*i:2*i+2]}, {P[2*i:2*i+2]}, {sL}, {T[0:2]} op_sel:[0,0,0] op_sel_hi:[1,0,0]')
        k(f'v_pk_fma_f32 {E[20+2*i:22+2*i]}, {P[2*i:2*i+2]}, {sL}, {T[0:2]} op_sel:[0,0,1] op_sel_hi:[1,0,1] neg_lo:[1,0,0] neg_hi:[1,0,0]')
    for i in range(40):
        k(f'v_exp_f32 {E[i]}, {E[i]}')
    for h in range(2):
        b = 20 * h
        a0, a1 = P[4*h:4*h+2], P[4*h+2:4*h+4]
        k(f'v_pk_add_f32 {a0}, {E[b:b+2]}, {E[b+2:b+4]}\nv_pk_add_f32 {a1}, {E[b+4:b+6]}, {E[b+6:b+8]}')
    for i in range(8, 20, 4):
        for h in range(2):
            b = 20 * h
            a0, a1 = P[4*h:4*h+2], P[4*h+2:4*h+4]
            k(f'v_pk_add_f32 {a0}, {a0}, {E[b+i:b+i+2]}\nv_pk_add_f32 {a1}, {a1}, {E[b+i+2:b+i+4]}')
    for h in range(2):
        k(f'v_pk_add_f32 {P[4*h:4*h+2]}, {P[4*h:4*h+2]}, {P[4*h+2:4*h+4]}')
    for h in range(2):
        k(f'v_add_f32 {T[2+h]}, {P[4*h]}, {P[4*h+1]}')
    for h in range(2):
        k(f'v_rcp_f32 {T[2+h]}, {T[2+h]}')
    for i in range(20):
        h = i // 10
        k(f'v_pk_mul_f32 {E[2*i:2*i+2]}, {E[2*i:2*i+2]}, {T[2:4]} op_sel:[0,{h}] op_sel_hi:[1,{h}]')
    for i in range(20):
        k(f'v_cvt_pk_bf16_f32 {out[i]}, {E[2*i]}, {E[2*i+1]}')

def cmul(k, d, x, y, t):
    k(f'v_pk_mul_f32 {t}, {x}, {y} op_sel:[0,0] op_sel_hi:[1,0]')
    k(f'v_pk_fma_f32 {d}, {x}, {y}, {t} op_sel:[1,1,0] op_sel_hi:[0,1,1] neg_lo:[1,0,0]')

def gen_k1():
    k = Kernel('k1_kernel')
    stamp(k, 0)
    load_ptrs(k)
    k('''s_cmp_ge_u32 s2, 256
s_cbranch_scc1 k1_exit
v_and_b32 v1, 63, v0
v_lshrrev_b32 v2, 6, v0
v_readfirstlane_b32 s3, v2''')
    stamp_init(k)
    k('''
s_and_b32 s4, s2, 7
s_lshr_b32 s5, s2, 3
s_cmp_ge_u32 s5, 24
s_cbranch_scc1 k1_prep
s_lshr_b32 s6, s4, 1
s_lshl_b32 s6, s6, 2
s_and_b32 s7, s5, 3
s_add_u32 s6, s6, s7
s_lshr_b32 s7, s5, 2
s_and_b32 s12, s4, 1
s_lshl_b32 s12, s12, 4
s_cmp_lt_u32 s7, 4
s_cbranch_scc0 k1_isq
s_lshl_b32 s8, s7, 2
s_add_u32 s8, s8, s12
s_mul_i32 s9, s8, 40
s_add_u32 s9, s9, 1280
s_mov_b32 s10, 1120
s_mov_b32 s11, 3200
s_branch k1_roles
k1_isq:
s_sub_u32 s8, s7, 4
s_lshl_b32 s8, s8, 3
s_add_u32 s8, s8, s12
s_mul_i32 s9, s8, 40
s_mov_b32 s10, 0
s_mov_b32 s11, 6400
k1_roles:
s_cmp_lt_u32 s3, 4
s_cbranch_scc1 k1_cons
''')
    k('s_sub_u32 s3, s3, 4')
    k('''s_lshl_b32 s12, s6, 7
s_lshl_b32 s13, s3, 5
s_add_u32 s12, s12, s13
v_lshrrev_b32 v3, 3, v1
v_add_u32 v8, s12, v3
v_mul_u32_u24 v8, 1280, v8
v_lshrrev_b32 v3, 4, v1
v_and_b32 v9, 7, v1
v_xor_b32 v9, v9, v3
v_lshl_add_u32 v4, v9, 4, v8
v_xor_b32 v9, 4, v9
v_lshl_add_u32 v5, v9, 4, v8
v_add_u32 v5, 10240, v5
v_add_u32 v6, 20480, v4
v_add_u32 v7, 20480, v5
s_mul_i32 s12, s3, 61440
s_add_u32 s12, s12, s9
''')
    for i in range(5):
        k(f'v_add_u32 v3, {64*i}, v1')
        divmod_const(k, 'v8', 'v9', 'v3', 20, 320)
        k(f'''v_lshrrev_b32 v15, 3, v8
v_lshlrev_b32 v15, 1, v15
v_sub_u32 v9, v9, v15
v_add_u32 v15, 20, v9
v_cmp_gt_i32 vcc, 0, v9
v_cndmask_b32 v9, v9, v15, vcc
v_mul_u32_u24 v8, 3840, v8
v_lshl_add_u32 v8, v9, 4, v8
v_add_u32 v8, s12, v8
v_add_u32 v15, s10, v8
v_cmp_le_u32 vcc, 10, v9
v_cndmask_b32 v{10+i}, v8, v15, vcc''')
    k('''s_and_b32 s13, s5, 3
s_mul_i32 s13, s13, 5
s_mul_i32 s14, s7, 6
s_add_u32 s13, s13, s14
s_lshl_b32 s14, s4, 1
s_add_u32 s13, s13, s14
s_lshr_b32 s13, s13, 1''')
    sdivmod_const(k, 's14', 's15', 's13', 10, 64)
    k('s_mov_b32 s13, s15')
    k('s_waitcnt lgkmcnt(0)')
    srd(k, 48, P_X, 2621440)
    srd(k, 52, P_W, 2457600)
    k('s_mul_i32 s12, s8, 800')
    srd(k, 56, P_PHI, 's11', 's12')
    k('s_lshl_b32 s60, s3, 12\ns_mul_i32 s61, s3, 5120\ns_add_u32 s61, s61, 16384')
    def issue():
        k('s_lshl_b32 s62, s13, 7\ns_mul_i32 s63, s13, 245760')
        for i in range(4):
            k(f's_add_u32 m0, s60, {i*1024}\nbuffer_load_dwordx4 v{4+i}, s[48:51], s62 offen lds')
        for i in range(5):
            k(f's_add_u32 m0, s61, {i*1024}\nbuffer_load_dwordx4 v{10+i}, s[52:55], s63 offen lds')
        k(f'''s_add_u32 s13, s13, 1
s_cmp_eq_u32 s13, 10
s_cselect_b32 s13, 0, s13
s_add_u32 s60, s60, {STAGE}
s_add_u32 s61, s61, {STAGE}
s_cmp_ge_u32 s60, {NST*STAGE}
s_cselect_b32 s64, {NST*STAGE}, 0
s_sub_u32 s60, s60, s64
s_sub_u32 s61, s61, s64''')
    k(f'''v_lshlrev_b32 v3, 4, v1
s_lshl_b32 s62, s3, 10
v_add_u32 v16, s62, v3
s_add_u32 m0, s62, {L1_WPHI}
buffer_load_dwordx4 v16, s[56:59], 0 offen lds
s_add_u32 s62, s62, 4096
s_min_u32 s62, s62, 6144
v_add_u32 v16, s62, v3
s_add_u32 m0, s62, {L1_WPHI}
buffer_load_dwordx4 v16, s[56:59], 0 offen lds
s_mov_b32 s65, 10''')
    stamp(k, 1)
    k('k1_ld_loop:')
    issue()
    k('''s_sub_u32 s65, s65, 1
s_cmp_gt_u32 s65, 7
s_cbranch_scc1 k1_ld_loop
s_waitcnt vmcnt(18)''')
    lstamp(k, 's65')
    k('''s_barrier
s_cmp_lg_u32 s65, 0
s_cbranch_scc1 k1_ld_loop
s_waitcnt vmcnt(9)
s_barrier
s_waitcnt vmcnt(0)
s_barrier
s_branch k1_end''')
    k('k1_cons:')
    V = Alloc('v', 3)
    acc = V.get(80, 4)
    WF = V.get(32, 4); XF = V.get(16, 4)
    bx0, bx1, bwa, bwb = V.get(), V.get(), V.get(), V.get()
    ax0, ax1, awa, awb = V.get(), V.get(), V.get(), V.get()
    tok, g, r4, c, t0, t1 = V.get(), V.get(), V.get(), V.get(), V.get(), V.get()
    k(f'''v_and_b32 {tok}, 15, v1
v_lshrrev_b32 {g}, 4, v1
v_bfe_u32 {r4}, v1, 2, 2
v_and_b32 {c}, 3, v1
v_lshrrev_b32 {t0}, 1, {tok}
v_xor_b32 {t0}, {t0}, {g}
v_lshlrev_b32 {t1}, 7, {tok}
s_lshl_b32 s12, s3, 12
v_add_u32 {t1}, s12, {t1}
v_lshl_add_u32 {bx0}, {t0}, 4, {t1}
v_xor_b32 {t0}, 4, {t0}
v_lshl_add_u32 {bx1}, {t0}, 4, {t1}
v_lshl_add_u32 {t0}, {g}, 3, {r4}
v_mul_u32_u24 {t0}, 320, {t0}
v_mul_u32_u24 {t1}, 40, {c}
v_add_u32 {t0}, {t0}, {t1}
v_and_b32 {t1}, 1, {g}
v_lshl_add_u32 {t0}, {t1}, 5, {t0}
v_add_u32 {bwa}, 16384, {t0}
v_and_b32 {t0}, 19, v1
v_subrev_u32 {t1}, 320, {bwa}
v_cmp_eq_u32 vcc, 19, {t0}
v_cndmask_b32 {bwb}, {bwa}, {t1}, vcc
s_mov_b32 s60, 0
s_mov_b32 s65, 10
s_waitcnt lgkmcnt(0)''')
    for i in range(80): k(f'v_mov_b32 {acc[i]}, 0')
    def A(tt, sg, tau): b = (tt * 10 + sg * 5 + tau) * 4; return acc[b:b+4]
    stamp(k, 1)
    k('s_waitcnt lgkmcnt(0)')
    k('k1_c_loop:')
    k(f'''v_add_u32 {ax0}, s60, {bx0}
v_add_u32 {ax1}, s60, {bx1}
v_add_u32 {awa}, s60, {bwa}
v_add_u32 {awb}, s60, {bwb}
s_barrier''')
    lstamp(k, 's65')
    frs = [(s, sg, tau) for s in range(2) for sg in range(2) for tau in range(5)]
    def rdw(n):
        s, sg, tau = frs[n]
        base = awb if (sg == 1 and tau >= 1) else awa
        f = WF[(n % 8) * 4:(n % 8) * 4 + 4]
        for half in range(2):
            k(f'ds_read_b64_tr_b16 {f[2*half:2*half+2]}, {base} offset:{10240*s + 1280*half + 160*sg + 8*tau}')
    def rdx(s):
        for tt in range(2):
            k(f'ds_read_b128 {XF[(s*2+tt)*4:(s*2+tt)*4+4]}, {ax1 if s else ax0} offset:{2048*tt}')
    AH = 5
    rdx(0)
    for n in range(AH): rdw(n)
    for n in range(20):
        s, sg, tau = frs[n]
        if n == 4: rdx(1)
        if n + AH < 20: rdw(n + AH)
        f = WF[(n % 8) * 4:(n % 8) * 4 + 4]
        for tt in range(2):
            k(f'v_mfma_f32_16x16x32_bf16 {A(tt,sg,tau)}, {f}, {XF[(s*2+tt)*4:(s*2+tt)*4+4]}, {A(tt,sg,tau)}')
    k(f'''s_add_u32 s60, s60, {STAGE}
s_cmp_ge_u32 s60, {NST*STAGE}
s_cselect_b32 s60, 0, s60
s_sub_u32 s65, s65, 1
s_cmp_lg_u32 s65, 0
s_cbranch_scc1 k1_c_loop''')
    stamp(k, 2)
    V.put(WF, XF, bx0, bx1, bwa, bwb, ax0, ax1, awa, awb)
    PA = V.get(52, 2)
    KB = V.get(10, 2); P = V.get(20, 4); E = V.get(40, 2); T = V.get(4, 2); OUT = V.get(20, 4)
    ap, q0, q1 = V.get(), V.get(), V.get()
    k(f's_mov_b32 s66, {LOG2E}\ns_mov_b32 s67, {LOG2E}')
    sL = Reg('s', 66, 2)
    k('s_waitcnt lgkmcnt(0)')
    srd(k, 48, P_WS, 0x500000, WS_PHIQ)
    k(f'''v_mul_u32_u24 {t0}, 800, {g}
v_mul_u32_u24 {t1}, 40, {r4}
v_add_u32 {t0}, {t0}, {t1}
v_mov_b32 {ap}, 6400
v_cmp_eq_u32 vcc, {c}, {g}
v_cndmask_b32 {ap}, {ap}, {t0}, vcc
v_add_u32 {ap}, {L1_WPHI}, {ap}
v_mov_b32 {t0}, 3200
v_cndmask_b32 {t1}, 0, {t0}, vcc''')
    k(f'''s_cmp_lt_u32 s7, 4
s_cbranch_scc1 k1_ep_kvaddr
s_mov_b32 s12, 163840
v_mul_lo_u32 {t0}, {g}, s12
v_lshl_add_u32 {q0}, {tok}, 4, {t0}
v_lshl_add_u32 {q1}, {tok}, 3, {t0}
s_mul_i32 s13, s8, 163840
s_lshl_b32 s14, s6, 3
s_lshl_b32 s15, s3, 1
s_add_u32 s14, s14, s15
s_mul_i32 s14, s14, 1280
s_add_u32 s13, s13, s14
s_branch k1_ep_go
k1_ep_kvaddr:
s_lshl_b32 s12, s3, 5
v_add_u32 {t0}, s12, {tok}
v_mul_u32_u24 {q0}, {PH_STR}, {t0}
v_mul_u32_u24 {q1}, {V_STR}, {t0}
v_mul_u32_u24 {t0}, 80, {g}
v_add3_u32 {q0}, {q0}, {t0}, 0
v_add_u32 {q0}, {PH_OFF}, {q0}
v_add_u32 {q1}, {V_OFF}, {q1}
k1_ep_go:
s_mov_b32 s65, 0
k1_ep_set:''')
    for tp in range(5):
        for st in range(3):
            for half in range(2 if st < 2 else 1):
                b = tp * 10 + st * 4 + half * 2
                k(f'ds_read_b64_tr_b16 {PA[b:b+2]}, {ap} offset:{40*(8*st+4*half) + 8*tp}')
    for tt in range(2):
        for tau in range(5):
            a = A(tt, 0, tau)
            k(f'v_cvt_pk_bf16_f32 {KB[2*tau]}, {a[0]}, {a[1]}\nv_cvt_pk_bf16_f32 {KB[2*tau+1]}, {a[2]}, {a[3]}')
        for tp in range(5):
            k(f'v_mfma_f32_16x16x32_bf16 {P[4*tp:4*tp+4]}, {PA[tp*10:tp*10+4]}, {KB[0:4]}, 0')
        for tp in range(5):
            k(f'v_mfma_f32_16x16x32_bf16 {P[4*tp:4*tp+4]}, {PA[tp*10+4:tp*10+8]}, {KB[4:8]}, {P[4*tp:4*tp+4]}')
        for tp in range(5):
            k(f'v_mfma_f32_16x16x16_bf16 {P[4*tp:4*tp+4]}, {PA[tp*10+8:tp*10+10]}, {KB[8:10]}, {P[4*tp:4*tp+4]}')
        softmax_phi(k, P, E, T, OUT, sL)
        lq, lj = k.newlabel('q'), k.newlabel('j')
        k(f's_cmp_lt_u32 s7, 4\ns_cbranch_scc0 {lq}')
        for i in range(5):
            k(f'ds_write_b128 {q0}, {OUT[4*i:4*i+4]} offset:{16*PH_STR*tt + 16*i}')
        k(f's_branch {lj}\n{lq}:')
        for i in range(4):
            k(f'buffer_store_dwordx4 {OUT[4*i:4*i+4]}, {q0}, s[48:51], s13 offen offset:{1280*tt + 256*i}')
        for i in range(2):
            k(f'buffer_store_dwordx2 {OUT[16+2*i:18+2*i]}, {q1}, s[48:51], s13 offen offset:{1280*tt + 1024 + 128*i}')
        k(f'{lj}:')
    stamp(k, 3)
    k(f'''s_cmp_lt_u32 s7, 4
s_cbranch_scc1 k1_kv
s_cmp_lg_u32 s65, 0
s_cbranch_scc1 k1_end
s_mov_b32 s65, 1
s_add_u32 s13, s13, {4*163840}
v_add_u32 {ap}, {ap}, {t1}''')
    for tt in range(2):
        for i in range(20):
            k(f'v_mov_b32 {acc[tt*40+i]}, {acc[tt*40+20+i]}')
    k('s_branch k1_ep_set')
    k('k1_kv:')
    k(f'v_mul_u32_u24 {t0}, 40, {g}\nv_add_u32 {t0}, {q1}, {t0}\nv_mov_b32 {T[0]}, 0x3f803f80\nv_mov_b32 {T[1]}, 0x3f803f80')
    for tt in range(2):
        for tau in range(5):
            a = A(tt, 1, tau)
            kb = KB[2*tau:2*tau+2] if tt == 0 else OUT[2*tau:2*tau+2]
            k(f'v_cvt_pk_bf16_f32 {kb[0]}, {a[0]}, {a[1]}\nv_cvt_pk_bf16_f32 {kb[1]}, {a[2]}, {a[3]}')
            k(f'ds_write_b64 {t0}, {kb} offset:{16*V_STR*tt + 8*tau}')
        k(f'ds_write_b64 {q1}, {T[0:2]} offset:{16*V_STR*tt + 160}')
    pa0, pa1, pb0, pb1 = ap, q0, q1, t1
    k(f'''v_lshl_add_u32 {t0}, {g}, 3, {r4}
v_mul_u32_u24 {pa0}, {PH_STR}, {t0}
s_mul_i32 s12, s3, 80
s_add_u32 s12, s12, {PH_OFF}
v_add_u32 {pa0}, s12, {pa0}
v_lshl_add_u32 {pa1}, {c}, 3, {pa0}
v_lshl_add_u32 {pa0}, {c}, 4, {pa0}
v_mul_u32_u24 {pb0}, {V_STR}, {t0}
v_add_u32 {pb0}, {V_OFF}, {pb0}
s_mul_i32 s12, s3, 40
s_add_u32 s14, s12, 32
v_mov_b32 {t0}, s14
v_mov_b32 {T[2]}, 160
v_cmp_eq_u32 vcc, 0, {c}
v_cndmask_b32 {t0}, {T[2]}, {t0}, vcc
v_add_u32 {pb1}, {pb0}, {t0}
v_lshl_add_u32 {pb0}, {c}, 3, {pb0}
v_add_u32 {pb0}, s12, {pb0}
s_waitcnt lgkmcnt(0)
s_barrier''')
    stamp(k, 4)
    D = acc[0:24]; FA = acc[24:72]; FB = E[0:32]
    for s in range(4):
        for mu in range(3):
            for half in range(2):
                b = s * 12 + mu * 4 + half * 2
                k(f'ds_read_b64_tr_b16 {FA[b:b+2]}, {pa1 if mu == 2 else pa0} offset:{PH_STR*(32*s+4*half) + (64 if mu == 2 else 8*mu)}')
        for nu in range(2):
            for half in range(2):
                b = s * 8 + nu * 4 + half * 2
                k(f'ds_read_b64_tr_b16 {FB[b:b+2]}, {pb1 if nu else pb0} offset:{V_STR*(32*s+4*half)}')
    for s in range(4):
        for mu in range(3):
            for nu in range(2):
                d = D[(nu*3+mu)*4:(nu*3+mu)*4+4]
                k(f'v_mfma_f32_16x16x32_bf16 {d}, {FA[s*12+mu*4:s*12+mu*4+4]}, {FB[s*8+nu*4:s*8+nu*4+4]}, {d if s else 0}')
    stamp(k, 5)
    k(f'''s_add_u32 s12, s8, s3
s_lshl_b32 s12, s12, 4
s_add_u32 s12, s12, s6
s_mul_i32 s12, s12, 3360''')
    srd(k, 52, P_WS, 3360, WS_KVP, 's12')
    a0, a0b, a1, big = pa0, pa1, pb0, pb1
    k(f'''v_mov_b32 {big}, 0x10000
v_lshlrev_b32 {a0}, 4, v1
v_cmp_gt_u32 vcc, 32, v1
v_cndmask_b32 {a0b}, {big}, {a0}, vcc
v_mul_u32_u24 {a1}, 5, {g}
v_add_lshl_u32 {a1}, {a1}, {tok}, 4
v_cmp_gt_u32 vcc, 5, {tok}
v_cndmask_b32 {a1}, {big}, {a1}, vcc''')
    for mu in range(3):
        k(f'buffer_store_dwordx4 {D[mu*4:mu*4+4]}, {a0b if mu == 2 else a0}, s[52:55], 0 offen offset:{1024*mu}')
    for mu in range(3):
        k(f'buffer_store_dwordx4 {D[12+mu*4:16+mu*4]}, {a1}, s[52:55], 0 offen offset:{2560+320*mu}')
    k('s_branch k1_end')
    gen_prep(k)
    k('k1_end:')
    endpgm(k)
    k('k1_exit:\ns_endpgm')
    return k

ROWS = list(range(16)) + [256 + 2*i for i in range(9)] + [512 + 4*i for i in range(5)] + [768 + 4*i for i in range(5)] \
     + [b + 8*i for b in (1024, 1280, 1536, 1792) for i in range(3)]
ROWBASE = [0, 16, 25, 30, 35, 38, 41, 44]
SEG = [0, 1, 2, 2, 3, 3, 3, 3]

def gen_prep(k):
    k('k1_prep:')
    V = Alloc('v', 3)
    PR = [V.get(6), V.get(6)]
    lo4, lo16 = V.get(), V.get()
    k(f'''s_sub_u32 s6, s2, 192
s_mul_i32 s60, s3, {WLDS}
s_mul_i32 s7, s6, 10
s_add_u32 s7, s7, s3
s_add_u32 s8, s7, 8
s_min_u32 s8, s8, 639
v_lshlrev_b32 {lo4}, 2, v1
v_lshlrev_b32 {lo16}, 4, v1
s_waitcnt lgkmcnt(0)
s_lshl_b32 s12, s7, 8
s_lshl_b32 s13, s8, 8
s_lshl_b32 s14, s7, 1
s_and_b32 s14, s14, -4
s_lshl_b32 s15, s8, 1
s_and_b32 s15, s15, -4
s_load_dword s68, s[{P_LDT}:{P_LDT+1}], s14
s_load_dword s69, s[{P_LDT}:{P_LDT+1}], s15''')
    for i, p in enumerate((P_ARE, P_AIM, P_BRE, P_BIM, P_CRE, P_CIM)):
        srd(k, 48, p, 163840)
        k(f'buffer_load_dword {PR[0][i]}, {lo4}, s[48:51], s12 offen\nbuffer_load_dword {PR[1][i]}, {lo4}, s[48:51], s13 offen')
    tok, g, r4, c, t0, t1, t2 = [V.get() for _ in range(7)]
    k(f'''v_and_b32 {tok}, 15, v1
v_lshrrev_b32 {g}, 4, v1
v_bfe_u32 {r4}, v1, 2, 2
v_and_b32 {c}, 3, v1
s_cmp_lt_u32 s3, 2
s_cbranch_scc1 k1_kgen
s_cmp_ge_u32 s3, 6
s_cbranch_scc1 k1_wo''')
    B = V.get(40, 4)
    k(f'''s_lshl_b32 s9, s6, 2
s_add_u32 s9, s9, s3
s_sub_u32 s9, s9, 2
s_and_b32 s10, s9, 15
s_lshr_b32 s9, s9, 4
s_mul_i32 s12, s9, {128*1280}
s_mul_i32 s13, s10, 80
s_add_u32 s12, s12, s13''')
    srd(k, 48, P_U, 2621440)
    for i in range(10):
        k(f'v_add_u32 {t0}, {64*i}, v1')
        divmod_const(k, t1, t2, t0, 5, 640)
        k(f'''v_mul_u32_u24 {t1}, 1280, {t1}
v_lshl_add_u32 {t1}, {t2}, 4, {t1}
s_add_u32 m0, s60, {1024*i}
buffer_load_dwordx4 {t1}, s[48:51], s12 offen lds''')
    k(f'''v_lshl_add_u32 {t0}, {g}, 2, {c}
v_lshl_add_u32 {t0}, {t0}, 2, {r4}
v_mul_u32_u24 {t0}, 80, {t0}
v_add_u32 {t0}, s60, {t0}
v_mul_u32_u24 {t1}, 272, {c}
v_lshrrev_b32 {t2}, 2, v1
v_lshl_add_u32 {t1}, {t2}, 3, {t1}
v_add_u32 {t1}, s60, {t1}
s_waitcnt vmcnt(0)''')
    for u in range(10):
        for half in range(2):
            b = (u * 2 + half) * 2
            k(f'ds_read_b64_tr_b16 {B[b:b+2]}, {t0} offset:{64*80*half + 8*u}')
    k('s_waitcnt lgkmcnt(0)')
    for u in range(10):
        for half in range(2):
            b = (u * 2 + half) * 2
            k(f'ds_write_b64 {t1}, {B[b:b+2]} offset:{4*272*u + 128*half}')
    k(f'''v_mul_u32_u24 {t0}, 272, {g}
v_lshl_add_u32 {t0}, {tok}, 4, {t0}
v_add_u32 {t0}, s60, {t0}
v_lshlrev_b32 {t1}, 12, {g}
v_lshl_add_u32 {t1}, {tok}, 4, {t1}
s_mul_i32 s12, s10, {40*4096}
s_lshl_b32 s13, s9, 8
s_add_u32 s12, s12, s13''')
    srd(k, 48, P_WS, 2621440, WS_UT)
    for u in range(10):
        k(f'ds_read_b128 {B[4*u:4*u+4]}, {t0} offset:{4*272*u}')
    for u in range(10):
        k(f'buffer_store_dwordx4 {B[4*u:4*u+4]}, {t1}, s[48:51], s12 offen\ns_add_u32 s12, s12, 16384')
    k('s_branch k1_kgen')
    k(f'''k1_wo:
s_lshl_b32 s9, s6, 1
s_add_u32 s9, s9, s3
s_sub_u32 s9, s9, 6
s_cmp_ge_u32 s9, 80
s_cbranch_scc1 k1_kgen
s_and_b32 s10, s9, 3
s_lshr_b32 s9, s9, 2
s_mul_i32 s12, s9, 40
s_sub_u32 s13, s9, 16
s_mul_i32 s13, s13, 160
s_add_u32 s13, s13, 16
s_cmp_lt_u32 s9, 16
s_cselect_b32 s12, s12, s13
s_cselect_b64 vcc, -1, 0
s_mul_i32 s12, s12, 1280
s_mul_i32 s13, s10, 320
s_add_u32 s12, s12, s13''')
    srd(k, 48, P_WO, 819200)
    t3, t4 = V.get(), V.get()
    for i in range(10):
        k(f'v_add_u32 {t0}, {64*i}, v1')
        divmod_const(k, t1, t2, t0, 20, 640)
        k(f'''v_lshrrev_b32 {t0}, 3, {t1}
v_bfe_u32 {t3}, {t1}, 2, 1
v_mul_u32_u24 {t3}, 20, {t3}
v_lshl_add_u32 {t3}, {t0}, 2, {t3}
v_and_b32 {t4}, 3, {t1}
v_add_u32 {t3}, {t3}, {t4}
v_and_b32 {t4}, 7, {t1}
v_mul_u32_u24 {t4}, 20, {t4}
v_add_u32 {t4}, {t4}, {t0}
v_cndmask_b32 {t3}, {t4}, {t3}, vcc
v_mul_u32_u24 {t3}, 1280, {t3}
v_lshl_add_u32 {t3}, {t2}, 4, {t3}
s_add_u32 m0, s60, {1024*i}
buffer_load_dwordx4 {t3}, s[48:51], s12 offen lds''')
    k(f'''v_lshl_add_u32 {t0}, {g}, 3, {r4}
v_mul_u32_u24 {t0}, 320, {t0}
v_add_u32 {t0}, s60, {t0}
v_lshl_add_u32 {t1}, {c}, 3, {t0}
v_lshl_add_u32 {t0}, {c}, 4, {t0}
s_lshl_b32 s12, s10, 1
s_mul_i32 s12, s12, 102400
s_mul_i32 s13, s9, 5120
s_add_u32 s12, s12, s13
s_add_u32 s13, s12, 102400
s_add_u32 s14, s12, 4096
s_add_u32 s15, s13, 4096
s_waitcnt vmcnt(0)''')
    srd(k, 48, P_WS, 819200, WS_WOP)
    for cgl in range(2):
        for tau in range(5):
            for half in range(2):
                b = (cgl * 5 + tau) * 4 + half * 2
                off = 1280 * half + 160 * cgl + (128 if tau == 4 else 64 * (tau >> 1) + 8 * (tau & 1))
                k(f'ds_read_b64_tr_b16 {B[b:b+2]}, {t1 if tau == 4 else t0} offset:{off}')
    for cgl in range(2):
        for tau in range(5):
            b = (cgl * 5 + tau) * 4
            so = ('s12', 's13')[cgl] if tau < 4 else ('s14', 's15')[cgl]
            k(f'buffer_store_dwordx4 {B[b:b+4]}, {lo16}, s[48:51], {so} offen offset:{1024*(tau & 3)}')
    V.put(B, t3, t4)
    k('k1_kgen:')
    stamp(k, 1)
    ACC = V.get(32, 4)
    ar = [V.get() for _ in range(4)]; ab = V.get(); aw = V.get(); al = V.get(); at = V.get()
    W = V.get(34, 2)
    H = V.get(2, 2); H1 = V.get(2, 2); X = V.get(2, 2); Y = V.get(2, 2); TT = V.get(2, 2); T2 = V.get(2, 2); W16c = V.get(2, 2)
    za, zb, dt = V.get(), V.get(), V.get()
    CV = V.get(8); FA = V.get(32, 4); FB = V.get(16, 4)
    def w(i): return W[2*i:2*i+2]
    k(f'''v_sub_u32 {t0}, 15, {tok}
v_cvt_f32_u32 {t1}, {t0}
v_lshlrev_b32 {t2}, 4, {g}
v_add_u32 {t2}, s60, {t2}
s_mov_b32 s12, {TROW}
v_mad_u32_u24 {ar[0]}, {t0}, s12, {t2}''')
    for sgm, sc in ((1, '0.5'), (2, '0x3e800000'), (3, '0x3e000000')):
        k(f'''v_mul_f32 {t0}, {sc}, {t1}
v_rndne_f32 {t0}, {t0}
v_cvt_u32_f32 {t0}, {t0}
v_mad_u32_u24 {ar[sgm]}, {t0}, s12, {t2}''')
    k(f'''v_mad_u32_u24 {ab}, {tok}, s12, {t2}
v_lshlrev_b32 {t0}, 5, {tok}
v_lshlrev_b32 {t1}, 3, {g}
v_sub_u32 {aw}, {t1}, {t0}
s_add_u32 s12, s60, 480
v_add_u32 {aw}, s12, {aw}
v_add_u32 {al}, s60, {lo16}
v_add_u32 {at}, s60, {lo4}
s_mov_b32 s70, {LOG2E}
s_mov_b32 s71, {INV2PI}
s_waitcnt lgkmcnt(0)
k1_kg_chan:
s_lshr_b32 s12, s68, 16
s_lshl_b32 s13, s68, 16
s_lshl_b32 s12, s12, 16
s_bitcmp1_b32 s7, 0
s_cselect_b32 s12, s12, s13
v_mov_b32 {dt}, s12
v_mul_f32 {dt}, s70, {dt}
v_exp_f32 {dt}, {dt}
v_cvt_pk_bf16_f32 {dt}, {dt}, {dt}
v_lshlrev_b32 {dt}, 16, {dt}
s_mov_b32 s65, 0''')
    for i in range(32): k(f'v_mov_b32 {ACC[i]}, 0')
    k('k1_kg_round:')
    p = PR[0]
    k(f'''v_lshlrev_b32 {za}, 16, {p[0]}
v_lshlrev_b32 {zb}, 16, {p[1]}
v_lshlrev_b32 {X[0]}, 16, {p[2]}
v_lshlrev_b32 {X[1]}, 16, {p[3]}
v_lshlrev_b32 {Y[0]}, 16, {p[4]}
v_lshlrev_b32 {Y[1]}, 16, {p[5]}
v_mul_f32 {za}, {dt}, {za}
v_mul_f32 {zb}, {dt}, {zb}
v_mul_f32 {X[0]}, {dt}, {X[0]}
v_mul_f32 {X[1]}, {dt}, {X[1]}
v_mul_f32 {za}, s70, {za}
v_mul_f32 {zb}, s71, {zb}''')
    for i in range(6): k(f'v_lshrrev_b32 {p[i]}, 16, {p[i]}')
    stamp(k, 2)
    cmul(k, X, X, Y, TT)
    k(f'v_xor_b32 {X[1]}, 0x80000000, {X[1]}')
    for dst, l in ((w(1), '1.0'), (w(16), '0x41800000'), (H1, '0x43800000')):
        k(f'''v_mul_f32 {TT[0]}, {l}, {za}
v_mul_f32 {TT[1]}, {l}, {zb}
v_exp_f32 {TT[0]}, {TT[0]}
v_fract_f32 {TT[1]}, {TT[1]}
v_cos_f32 {dst[0]}, {TT[1]}
v_sin_f32 {dst[1]}, {TT[1]}
v_pk_mul_f32 {dst}, {dst}, {TT} op_sel:[0,0] op_sel_hi:[1,0]''')
    k(f'v_mov_b32 {W16c[0]}, {w(16)[0]}\nv_xor_b32 {W16c[1]}, 0x80000000, {w(16)[1]}')
    ncv = [0]
    def put(row, val):
        cv = CV[ncv[0] % 8]; ncv[0] += 1
        k(f'v_cvt_pk_bf16_f32 {cv}, {val[0]}, {val[1]}\nds_write_b32 {at}, {cv} offset:{row*TROW}')
    k(f'v_mov_b32 {CV[7]}, 0x3f80\nds_write_b32 {at}, {CV[7]} offset:0')
    put(1, w(1)); put(47, X)
    for i in range(2, 16):
        cmul(k, w(i), w(i // 2), w(i - i // 2), w(i))
        cmul(k, X, X, W16c, TT)
        put(i, w(i)); put(47 + i - 1, X)
    cmul(k, X, X, W16c, TT); put(62, X)
    cur = H1
    for a in range(1, 8):
        if a >= 2:
            cmul(k, H, cur, H1, TT); cur = H
        put(ROWBASE[a], cur)
        step = 1 << SEG[a]
        for n, o in enumerate(range(step, 17, step)):
            d = (Y, T2)[n & 1]
            cmul(k, d, cur, w(o), d)
            assert ROWS[ROWBASE[a] + 1 + n] == 256 * a + o
            put(ROWBASE[a] + 1 + n, d)
    stamp(k, 3)
    for s in range(4):
        k(f'ds_read_b128 {FB[4*s:4*s+4]}, {ab} offset:{47*TROW + 64*s}')
    seq = [(s, a) for s in range(4) for a in range(8)]
    def rda(n):
        s, a = seq[n]
        k(f'ds_read_b128 {FA[(n%8)*4:(n%8)*4+4]}, {ar[SEG[a]]} offset:{ROWBASE[a]*TROW + 64*s}')
    for n in range(6): rda(n)
    for n in range(32):
        s, a = seq[n]
        if n + 6 < 32: rda(n + 6)
        k(f'v_mfma_f32_16x16x32_bf16 {ACC[4*a:4*a+4]}, {FA[(n%8)*4:(n%8)*4+4]}, {FB[4*s:4*s+4]}, {ACC[4*a:4*a+4]}')
    k('''s_add_u32 s65, s65, 1
s_cmp_lt_u32 s65, 2
s_cbranch_scc1 k1_kg_round''')
    stamp(k, 4)
    for a in range(8):
        k(f'v_cvt_pk_bf16_f32 {FA[2*a]}, {ACC[4*a]}, {ACC[4*a+1]}\nv_cvt_pk_bf16_f32 {FA[2*a+1]}, {ACC[4*a+2]}, {ACC[4*a+3]}')
        k(f'ds_write_b64 {aw}, {FA[2*a:2*a+2]} offset:{3584 - 512*a}')
    k(f'v_mov_b32 {t0}, 0\nds_write_b32 {at}, {t0} offset:4096')
    k('s_lshl_b32 s12, s7, 13')
    srd(k, 48, P_WS, 8192, WS_KR, 's12')
    k('s_mov_b32 s13, 4096')
    for i in range(4):
        k(f'ds_read_b128 {ACC[8*i:8*i+4]}, {al} offset:{1024*i}\nds_read_b32 {ACC[8*i+4]}, {al} offset:{1024*i+16}')
    for i in range(4):
        k(f'buffer_store_dwordx4 {ACC[8*i:8*i+4]}, {lo16}, s[48:51], 0 offen offset:{1024*i}')
        for j in range(4):
            k(f'v_alignbit_b32 {FA[4*i+j]}, {ACC[8*i+j+1]}, {ACC[8*i+j]}, 16')
        k(f'buffer_store_dwordx4 {FA[4*i:4*i+4]}, {lo16}, s[48:51], s13 offen offset:{1024*i}')
    stamp(k, 5)
    k('''s_cmp_ge_u32 s3, 2
s_cbranch_scc1 k1_end
s_mov_b32 s3, 2
s_mov_b32 s7, s8
s_mov_b32 s68, s69''')
    for i in range(6): k(f'v_mov_b32 {PR[0][i]}, {PR[1][i]}')
    k('s_branch k1_kg_chan')

if __name__ == '__main__':
    k = gen_k1()
    open('k1_only.s', 'w').write(module('', [(k, '')], [('k1_kernel', 256, 512, L1_LDS)]))
    print(k.info)
```

```python
from common import *
KC = 4160
U_OFF = 4 * KC
RED_T = 1280
L2_LDS = 4 * 8 * RED_T

def gen_k2():
    k = Kernel('k2_kernel')
    stamp(k, 0)
    load_ptrs(k)
    k('''s_cmp_ge_u32 s2, 768
s_cbranch_scc1 k2_exit
v_and_b32 v1, 63, v0
v_lshrrev_b32 v2, 6, v0
v_readfirstlane_b32 s3, v2''')
    stamp_init(k, 0x40000)
    V = Alloc('v', 3)
    tok, g, lo16, t0, t1, t2 = [V.get() for _ in range(6)]
    k(f'''v_and_b32 {tok}, 15, v1
v_lshrrev_b32 {g}, 4, v1
v_lshlrev_b32 {lo16}, 4, v1
s_cmp_lt_u32 s2, 128
s_cbranch_scc1 k2_o
s_sub_u32 s6, s2, 128''')
    k(f'''s_lshl_b32 s12, s6, 13
s_and_b32 s13, s3, 1
s_lshl_b32 s13, s13, 12
s_add_u32 s12, s12, s13
s_lshr_b32 s13, s3, 1
s_lshl_b32 s13, s13, 2
v_add_u32 {t0}, s13, {lo16}
s_mul_i32 s14, s3, {KC}
s_lshl_b32 s15, s6, 12
s_lshl_b32 s7, s3, 10
s_waitcnt lgkmcnt(0)''')
    srd(k, 48, P_WS, 4096, WS_KR, 's12')
    srd(k, 52, P_WS, 4096, WS_UT, 's15')
    k('s_mov_b32 m0, s14')
    for i in range(4):
        k(f'buffer_load_dwordx4 {t0}, s[48:51], 0 offen offset:{1024*i} lds')
    k(f's_add_u32 m0, s7, {U_OFF + 480}\nbuffer_load_dwordx4 {lo16}, s[52:55], s7 offen lds')
    aF, aG, aW, aR = [V.get() for _ in range(4)]
    k(f'''v_mov_b32 {t2}, 0
v_lshlrev_b32 {t0}, 2, {tok}
v_add_u32 {t0}, s14, {t0}
ds_write_b32 {t0}, {t2} offset:4096
v_min_u32 {t0}, 119, v0
v_lshlrev_b32 {t0}, 2, {t0}
ds_write_b32 {t0}, {t2} offset:{U_OFF}
v_sub_u32 {t0}, 15, {tok}
v_and_b32 {t1}, 3, {t0}
v_mul_u32_u24 {aF}, {KC}, {t1}
v_lshrrev_b32 {t0}, 2, {t0}
v_lshl_add_u32 {aF}, {t0}, 3, {aF}
v_lshl_add_u32 {aF}, {g}, 4, {aF}
s_lshl_b32 s12, s3, 7
v_add_u32 {aF}, s12, {aF}
v_lshlrev_b32 {aG}, 5, {tok}
v_lshl_add_u32 {aG}, {g}, 4, {aG}
v_add_u32 {aG}, s12, {aG}
v_mul_u32_u24 {aW}, 320, {g}
v_lshl_add_u32 {aW}, {tok}, 4, {aW}
s_mul_i32 s12, s3, {8*RED_T}
v_add_u32 {aW}, s12, {aW}
v_and_b32 {t0}, 3, v1
v_mul_u32_u24 {aR}, 320, {t0}
v_lshrrev_b32 {t0}, 2, v1
v_lshl_add_u32 {aR}, {t0}, 4, {aR}
s_mul_i32 s12, s3, {2*RED_T}
v_add_u32 {aR}, s12, {aR}
s_waitcnt vmcnt(0) lgkmcnt(0)
s_barrier''')
    stamp(k, 1)
    ACC = V.get(32, 4); F = [V.get(32, 4), V.get(32, 4)]; G = [V.get(32, 4), V.get(32, 4)]
    def rd(ph, n):
        k(f'ds_read_b128 {G[ph][4*n:4*n+4]}, {aG} offset:{U_OFF + 512*n + 64*ph}')
        for half in range(2):
            k(f'ds_read_b64 {F[ph][4*n+2*half:4*n+2*half+2]}, {aF} offset:{3584 - 512*n + 64*ph + 8*half}')
    order = sorted([(c, e) for c in range(8) for e in range(8) if c + e < 8], key=lambda ce: (max(ce), ce))
    for n in range(8): rd(0, n)
    seen = set()
    for ph in range(2):
        for i, (c, e) in enumerate(order):
            if ph == 0 and i % 4 == 3 and i // 4 < 8: rd(1, i // 4)
            b = c + e
            a = ACC[4*b:4*b+4]
            k(f'v_mfma_f32_16x16x32_bf16 {a}, {F[ph][4*c:4*c+4]}, {G[ph][4*e:4*e+4]}, {a if b in seen else 0}')
            seen.add(b)
    stamp(k, 2)
    k('s_barrier')
    for b in range(8):
        k(f'ds_write_b128 {aW}, {ACC[4*b:4*b+4]} offset:{b*RED_T}')
    srd(k, 48, P_WS, 4096, WS_YT, 's15')
    k(f'v_lshlrev_b32 {t0}, 3, v1\ns_waitcnt lgkmcnt(0)\ns_barrier')
    Rr = F[0]
    for j in range(2):
        for w in range(4):
            k(f'ds_read_b128 {Rr[(j*4+w)*4:(j*4+w)*4+4]}, {aR} offset:{w*8*RED_T + j*RED_T}')
    for j in range(2):
        b = j * 16
        for h in range(2):
            k(f'v_pk_add_f32 {Rr[b+2*h:b+2*h+2]}, {Rr[b+2*h:b+2*h+2]}, {Rr[b+4+2*h:b+6+2*h]}')
            k(f'v_pk_add_f32 {Rr[b+8+2*h:b+10+2*h]}, {Rr[b+8+2*h:b+10+2*h]}, {Rr[b+12+2*h:b+14+2*h]}')
        for h in range(2):
            k(f'v_pk_add_f32 {Rr[b+2*h:b+2*h+2]}, {Rr[b+2*h:b+2*h+2]}, {Rr[b+8+2*h:b+10+2*h]}')
        k(f'v_cvt_pk_bf16_f32 {Rr[b+4]}, {Rr[b]}, {Rr[b+1]}\nv_cvt_pk_bf16_f32 {Rr[b+5]}, {Rr[b+2]}, {Rr[b+3]}')
        k(f'buffer_store_dwordx2 {Rr[b+4:b+6]}, {t0}, s[48:51], s7 offen offset:{512*j}')
    k('s_branch k2_end')
    V.put(ACC, F[0], F[1], G[0], G[1], aF, aG, aW, aR)
    k(f'''k2_o:
s_and_b32 s6, s2, 7
s_lshl_b32 s6, s6, 2
s_lshr_b32 s7, s2, 3
s_and_b32 s12, s7, 3
s_add_u32 s6, s6, s12
s_lshr_b32 s7, s7, 2''')
    a0b, a1, a1b, big, lo8 = [V.get() for _ in range(5)]
    PT = V.get(96, 4); PQ = V.get(48, 2)
    k(f'''v_mov_b32 {big}, 0x100000
v_cmp_gt_u32 vcc, 32, v1
v_cndmask_b32 {a0b}, {big}, {lo16}, vcc
v_lshlrev_b32 {lo8}, 3, v1
v_cndmask_b32 {lo8}, {big}, {lo8}, vcc
v_lshrrev_b32 {t0}, 2, {tok}
v_and_b32 {t1}, 3, {tok}
v_cmp_eq_u32 s[12:13], 0, {t1}
v_cndmask_b32 {t0}, {t0}, 4, s[12:13]
v_mul_u32_u24 {a1}, 5, {g}
v_add_lshl_u32 {a1}, {a1}, {t0}, 4
v_cmp_gt_u32 s[12:13], 2, {t1}
v_cndmask_b32 {a1}, {big}, {a1}, s[12:13]
v_cndmask_b32 {a1b}, {big}, {a1}, vcc
s_mul_i32 s12, s6, {16*3360}
s_mul_i32 s13, s3, {4*3360}
s_mul_i32 s14, s6, 163840
s_lshl_b32 s8, s7, 5
s_lshl_b32 s15, s3, 3
s_add_u32 s8, s8, s15
s_mul_i32 s15, s8, 1280
s_add_u32 s14, s14, s15
s_waitcnt lgkmcnt(0)''')
    srd(k, 48, P_WS, 16*3360, WS_KVP, 's12')
    srd(k, 52, P_WS, 8*1280, WS_PHIQ, 's14')
    for r in range(4):
        for mu in range(3):
            k(f'buffer_load_dwordx4 {PT[r*24+mu*4:r*24+mu*4+4]}, {a0b if mu == 2 else lo16}, s[48:51], s13 offen offset:{1024*mu}')
        for mu in range(3):
            k(f'buffer_load_dwordx4 {PT[r*24+12+mu*4:r*24+16+mu*4]}, {a1b if mu == 2 else a1}, s[48:51], s13 offen offset:{2560+320*mu}')
        k('s_add_u32 s13, s13, 3360')
    k('s_mov_b32 s13, 0')
    for tt in range(8):
        o = (tt % 3) * 1280
        k(f'buffer_load_dwordx4 {PQ[tt*6:tt*6+4]}, {lo16}, s[52:55], s13 offen offset:{o}')
        k(f'buffer_load_dwordx2 {PQ[tt*6+4:tt*6+6]}, {lo8}, s[52:55], s13 offen offset:{o+1024}')
        if tt % 3 == 2: k('s_add_u32 s13, s13, 3840')
    for i in range(12):
        k(f'v_pk_add_f32 {PT[2*i:2*i+2]}, {PT[2*i:2*i+2]}, {PT[24+2*i:26+2*i]}')
    for i in range(12):
        k(f'v_pk_add_f32 {PT[48+2*i:50+2*i]}, {PT[48+2*i:50+2*i]}, {PT[72+2*i:74+2*i]}')
    for i in range(12):
        k(f'v_pk_add_f32 {PT[2*i:2*i+2]}, {PT[2*i:2*i+2]}, {PT[48+2*i:50+2*i]}')
    k(f's_mul_i32 s12, s3, 6144\nv_add_u32 {t0}, s12, {lo16}')
    for i in range(6):
        k(f'ds_write_b128 {t0}, {PT[4*i:4*i+4]} offset:{1024*i}')
    k('s_waitcnt lgkmcnt(0)\ns_barrier')
    stamp(k, 1)
    for w in range(4):
        for i in range(6):
            k(f'ds_read_b128 {PT[w*24+4*i:w*24+4*i+4]}, {lo16} offset:{6144*w + 1024*i}')
    for i in range(12):
        k(f'v_pk_add_f32 {PT[2*i:2*i+2]}, {PT[2*i:2*i+2]}, {PT[24+2*i:26+2*i]}')
    for i in range(12):
        k(f'v_pk_add_f32 {PT[48+2*i:50+2*i]}, {PT[48+2*i:50+2*i]}, {PT[72+2*i:74+2*i]}')
    for i in range(12):
        k(f'v_pk_add_f32 {PT[2*i:2*i+2]}, {PT[2*i:2*i+2]}, {PT[48+2*i:50+2*i]}')
    KA = PT[24:36]
    for i in range(12):
        k(f'v_cvt_pk_bf16_f32 {KA[i]}, {PT[2*i]}, {PT[2*i+1]}')
    k(f'''s_mul_i32 s12, s8, 20480
s_lshr_b32 s13, s6, 1
s_lshl_b32 s13, s13, 10
s_and_b32 s14, s6, 1
s_lshl_b32 s14, s14, 3
s_add_u32 s13, s13, s14
s_lshr_b32 s14, s6, 3
s_add_u32 s14, s14, 16
s_lshl_b32 s14, s14, 10
s_and_b32 s15, s6, 7
s_lshl_b32 s15, s15, 1
s_add_u32 s14, s14, s15
s_mov_b32 s9, 0x358637bd''')
    srd(k, 48, P_WS, 8*20480, WS_O, 's12')
    D = PT[36:96]
    def d(tt, nu): b = ((tt % 6) * 2 + nu) * 4; return D[b:b+4]
    def mm(tt):
        for nu in range(2):
            k(f'v_mfma_f32_16x16x32_bf16 {d(tt,nu)}, {KA[nu*6:nu*6+4]}, {PQ[tt*6:tt*6+4]}, 0')
        for nu in range(2):
            k(f'v_mfma_f32_16x16x16_bf16 {d(tt,nu)}, {KA[nu*6+4:nu*6+6]}, {PQ[tt*6+4:tt*6+6]}, {d(tt,nu)}')
    def fin(tt):
        n, m = d(tt, 0), d(tt, 1)
        k(f'''v_add_f32 {m[0]}, s9, {m[0]}
v_rcp_f32 {m[0]}, {m[0]}
v_pk_mul_f32 {n[0:2]}, {n[0:2]}, {m[0:2]} op_sel:[0,0] op_sel_hi:[1,0]
v_pk_mul_f32 {n[2:4]}, {n[2:4]}, {m[0:2]} op_sel:[0,0] op_sel_hi:[1,0]
v_mul_f32 {m[1]}, {m[1]}, {m[0]}
v_cvt_pk_bf16_f32 {m[2]}, {n[0]}, {n[1]}
v_cvt_pk_bf16_f32 {m[3]}, {n[2]}, {n[3]}
v_cvt_pk_bf16_f32 {m[1]}, {m[1]}, {m[1]}
buffer_store_dwordx2 {m[2:4]}, {lo16}, s[48:51], s13 offen
buffer_store_short {m[1]}, {lo16}, s[48:51], s14 offen
s_add_u32 s13, s13, 20480
s_add_u32 s14, s14, 20480''')
    mm(0); mm(1)
    for tt in range(8):
        if tt + 2 < 8: mm(tt + 2)
        fin(tt)
    k('k2_end:')
    endpgm(k)
    k('k2_exit:\ns_endpgm')
    return k
```

```python
from common import *
Y_OFF = 102400
ST_OFF = Y_OFF + 10240
ST_STR = 176
L3_LDS = ST_OFF + 4 * 2 * 16 * ST_STR

def gen_k3():
    k = Kernel('k3_kernel')
    stamp(k, 0)
    load_ptrs(k)
    k('''s_cmp_ge_u32 s2, 256
s_cbranch_scc1 k3_exit
v_and_b32 v1, 63, v0
v_lshrrev_b32 v2, 6, v0
v_readfirstlane_b32 s3, v2''')
    stamp_init(k, 0x100000)
    V = Alloc('v', 3)
    tok, g, r4, c, lo16, t0, t1, t2 = [V.get() for _ in range(8)]
    OF = V.get(80, 4); ACC = V.get(20, 4); WF = V.get(40, 4); U = V.get(12, 4); DS = V.get(12, 4); Y = V.get(12, 4)
    ga = [V.get() for _ in range(3)]; la = [V.get() for _ in range(3)]
    k(f'''v_and_b32 {tok}, 15, v1
v_lshrrev_b32 {g}, 4, v1
v_bfe_u32 {r4}, v1, 2, 2
v_and_b32 {c}, 3, v1
v_lshlrev_b32 {lo16}, 4, v1
s_and_b32 s4, s2, 7
s_lshr_b32 s5, s2, 3
s_lshr_b32 s6, s4, 1
s_lshl_b32 s6, s6, 3
s_and_b32 s12, s5, 7
s_add_u32 s6, s6, s12
s_and_b32 s7, s4, 1
s_lshl_b32 s7, s7, 2
s_lshr_b32 s12, s5, 3
s_add_u32 s7, s7, s12
s_mul_i32 s12, s7, 102400
s_lshl_b32 s8, s6, 2
s_add_u32 s8, s8, s3
s_mul_i32 s13, s8, 20480
s_mul_i32 s9, s3, 5120
s_waitcnt lgkmcnt(0)''')
    srd(k, 48, P_WS, 102400, WS_WOP, 's12')
    srd(k, 52, P_WS, 20480, WS_O, 's13')
    for gq in range(5):
        k(f's_add_u32 s10, s9, {gq*20480}\ns_mov_b32 m0, s10')
        for i in range(4):
            k(f'buffer_load_dwordx4 {lo16}, s[48:51], s10 offen offset:{1024*i} lds')
        k('s_add_u32 s10, s10, 4096\ns_mov_b32 m0, s10')
        k(f'buffer_load_dwordx4 {lo16}, s[48:51], s10 offen lds')
        k(f's_mov_b32 s11, {gq*4096}')
        for i in range(4):
            s = gq * 4 + i
            k(f'buffer_load_dwordx4 {OF[4*s:4*s+4]}, {lo16}, s[52:55], s11 offen offset:{1024*i}')
    k(f'''s_mul_i32 s12, s7, {80*4096}
s_lshl_b32 s13, s6, 7
s_add_u32 s12, s12, s13
v_lshrrev_b32 {t0}, 3, v1
v_lshlrev_b32 {t0}, 12, {t0}
v_and_b32 {t1}, 7, v1
v_lshl_add_u32 {t0}, {t1}, 4, {t0}''')
    srd(k, 56, P_WS, 80*4096, WS_YT, 's12')
    for i in range(3):
        k(f'''s_add_u32 s10, s3, {4*i}
s_min_u32 s10, s10, 9
s_lshl_b32 s11, s10, 15
s_lshl_b32 s10, s10, 10
s_add_u32 m0, s10, {Y_OFF}
buffer_load_dwordx4 {t0}, s[56:59], s11 offen lds''')
    k(f's_mul_i32 s12, s8, {16*1280}\ns_mul_i32 s13, s7, 160\ns_add_u32 s12, s12, s13')
    srd(k, 56, P_U, 16*1280, 's12')
    srd(k, 60, P_DSK, 160, 's13')
    k(f's_mul_i32 s14, s3, {2*16*ST_STR}\ns_add_u32 s14, s14, {ST_OFF}\nv_mov_b32 {t2}, 0x100000')
    for i in range(3):
        k(f'v_add_u32 {t0}, {64*i}, v1')
        divmod_const(k, ga[i], t1, t0, 10, 192)
        k(f'''v_lshlrev_b32 {t1}, 4, {t1}
v_min_u32 {la[i]}, 15, {ga[i]}
v_mul_u32_u24 {la[i]}, {ST_STR}, {la[i]}
v_add3_u32 {la[i]}, {la[i]}, {t1}, s14
v_mul_u32_u24 {t0}, 1280, {ga[i]}
v_add_u32 {t0}, {t0}, {t1}
buffer_load_dwordx4 {U[4*i:4*i+4]}, {t0}, s[56:59], 0 offen
buffer_load_dwordx4 {DS[4*i:4*i+4]}, {t1}, s[60:63], 0 offen
v_mul_u32_u24 {ga[i]}, 2560, {ga[i]}
v_add_u32 {ga[i]}, {ga[i]}, {t1}''')
    k(f's_mul_i32 s12, s8, {16*2560}\ns_add_u32 s12, s12, s13')
    srd(k, 56, P_OUT, 15*2560 + 1280 + 160, 's12')
    NB = 9
    for gq in range(5):
        k(f's_waitcnt vmcnt({(4-gq)*9 + NB + 4})\ns_barrier')
        if gq == 0: stamp(k, 1)
        seq = [(i, tau) for i in range(4) for tau in range(5)]
        def rd(n):
            i, tau = seq[n]
            off = gq * 20480 + i * 5120 + tau * 1024
            base = lo16 if off < 65536 else t2
            k(f'ds_read_b128 {WF[(n%10)*4:(n%10)*4+4]}, {base} offset:{off if off < 65536 else off - 61440}')
        if gq == 3: k(f'v_add_u32 {t2}, 61440, {lo16}')
        for n in range(8): rd(n)
        for n in range(20):
            i, tau = seq[n]; s = gq * 4 + i
            if n + 8 < 20: rd(n + 8)
            a = ACC[4*tau:4*tau+4]
            k(f'v_mfma_f32_16x16x32_bf16 {a}, {WF[(n%10)*4:(n%10)*4+4]}, {OF[4*s:4*s+4]}, {a if s else 0}')
    stamp(k, 2)
    k(f'''v_mul_u32_u24 {t0}, {ST_STR}, {tok}
v_add_u32 {t0}, s14, {t0}
v_lshl_add_u32 {t1}, {g}, 3, {t0}
v_lshl_add_u32 {t0}, {g}, 4, {t0}''')
    for i in range(10):
        k(f'v_cvt_pk_bf16_f32 {WF[i]}, {ACC[2*i]}, {ACC[2*i+1]}')
    k(f'ds_write_b128 {t0}, {WF[0:4]}\nds_write_b128 {t0}, {WF[4:8]} offset:64\nds_write_b64 {t1}, {WF[8:10]} offset:128')
    k(f'''v_lshl_add_u32 {t2}, {g}, 2, {r4}
v_lshlrev_b32 {t2}, 7, {t2}
v_lshl_add_u32 {t2}, {c}, 3, {t2}
s_lshl_b32 s12, s3, 5
s_add_u32 s12, s12, {Y_OFF}
v_add_u32 {t2}, s12, {t2}
s_waitcnt vmcnt(6)
s_barrier''')
    for i in range(5):
        k(f'ds_read_b64_tr_b16 {WF[12+2*i:14+2*i]}, {t2} offset:{2048*i}')
    for i in range(3):
        k(f'ds_read_b128 {OF[4*i:4*i+4]}, {la[i]}')
    for i in range(5):
        k(f'ds_write_b64 {t1}, {WF[12+2*i:14+2*i]} offset:{16*ST_STR + 32*i}')
    for i in range(3):
        k(f'buffer_store_dwordx4 {OF[4*i:4*i+4]}, {ga[i]}, s[56:59], 0 offen')
    for i in range(3):
        k(f'ds_read_b128 {Y[4*i:4*i+4]}, {la[i]} offset:{16*ST_STR}')
    A2, B2 = OF[16:18], OF[18:20]
    for i in range(12):
        k(f'''v_lshlrev_b32 {A2[0]}, 16, {U[i]}
v_and_b32 {A2[1]}, 0xffff0000, {U[i]}
v_lshlrev_b32 {B2[0]}, 16, {DS[i]}
v_and_b32 {B2[1]}, 0xffff0000, {DS[i]}
v_pk_mul_f32 {A2}, {A2}, {B2}
v_cvt_pk_bf16_f32 {U[i]}, {A2[0]}, {A2[1]}''')
    for i in range(12):
        k(f'''v_lshlrev_b32 {A2[0]}, 16, {U[i]}
v_and_b32 {A2[1]}, 0xffff0000, {U[i]}
v_lshlrev_b32 {B2[0]}, 16, {Y[i]}
v_and_b32 {B2[1]}, 0xffff0000, {Y[i]}
v_pk_add_f32 {A2}, {A2}, {B2}
v_cvt_pk_bf16_f32 {U[i]}, {A2[0]}, {A2[1]}''')
        if i % 4 == 3:
            k(f'buffer_store_dwordx4 {U[i-3:i+1]}, {ga[i//4]}, s[56:59], 0 offen offset:1280')
    endpgm(k)
    k('k3_exit:\ns_endpgm')
    return k
```

```python
import sys
from common import *
from k1 import gen_k1, L1_LDS
from k2 import gen_k2, L2_LDS
from k3 import gen_k3, L3_LDS
ref = open('concat_heads__linear_kernel_hedgehog__ssm_conv_s4__prompt.s.ref').read().split('\n')
hdr = '\n'.join(l for l in ref[:17] if l.startswith(';') and '@launch' not in l)
ks = [gen_k1(), gen_k2(), gen_k3()]
txt = module(hdr, [(x, '') for x in ks], [('k1_kernel', 256, 512, L1_LDS), ('k2_kernel', 768, 256, L2_LDS), ('k3_kernel', 256, 256, L3_LDS)])
out = sys.argv[1] if len(sys.argv) > 1 else 'all.s'
open(out, 'w').write(txt)
for x in ks: print(x.name, x.info)
```

```python
from gen import *
WS_PHIQ = 0
WS_KVP  = 0x500000
WS_UT   = 0x6C0000
WS_KR   = 0x940000
WS_O    = 0xE40000
WS_YT   = 0x10C0000
WS_WOP  = 0x1340000
WS_END  = 0x1410000
LOG2E = 0x3fb8aa3b
INV2PI = 0x3e22f983
P_X, P_W, P_PHI, P_WO, P_U, P_ARE, P_AIM, P_BRE, P_BIM, P_CRE, P_CIM, P_LDT, P_DSK, P_OUT, P_DBG, P_WS = [16 + 2 * i for i in range(16)]

def load_ptrs(k):
    k('s_load_dwordx16 s[16:31], s[0:1], 0\ns_load_dwordx16 s[32:47], s[0:1], 64')

def srd(k, d, p, nbytes, off=None, off2=None):
    if off is None:
        k(f's_mov_b32 s{d}, s{p}\ns_mov_b32 s{d+1}, s{p+1}')
    else:
        k(f's_add_u32 s{d}, s{p}, {off}\ns_addc_u32 s{d+1}, s{p+1}, 0')
    if off2 is not None:
        k(f's_add_u32 s{d}, s{d}, {off2}\ns_addc_u32 s{d+1}, s{d+1}, 0')
    k(f's_mov_b32 s{d+2}, {nbytes}\ns_mov_b32 s{d+3}, 0x20000')

def divmod_const(k, q, r, x, c, maxv):
    sh = 16
    m = (1 << sh) // c + 1
    assert all((v * m) >> sh == v // c for v in range(maxv)) and m * maxv < (1 << 32) and m < (1 << 24)
    k(f'v_mul_u32_u24 {q}, {m}, {x}\nv_lshrrev_b32 {q}, {sh}, {q}\nv_mul_u32_u24 {r}, {c}, {q}\nv_sub_u32 {r}, {x}, {r}')

def sdivmod_const(k, q, r, x, c, maxv):
    sh = 16
    m = (1 << sh) // c + 1
    assert all((v * m) >> sh == v // c for v in range(maxv))
    k(f's_mul_i32 {q}, {x}, {m}\ns_lshr_b32 {q}, {q}, {sh}\ns_mul_i32 {r}, {q}, {c}\ns_sub_u32 {r}, {x}, {r}')

WS_DBG = 0x1800000
import os
STAMPS = bool(int(os.environ.get('STAMPS', '0')))
DBGT = bool(int(os.environ.get('DBGT', '0')))
def stamp(k, i):
    if DBGT and i == 0: k('s_memrealtime s[76:77]')
    if STAMPS: k(f's_memrealtime s[{76+2*i}:{77+2*i}]')
def stamp_init(k, woff=0):
    if STAMPS:
        k('s_lshl_b32 s74, s2, 4\ns_add_u32 s74, s74, s3\ns_lshl_b32 s74, s74, 6\ns_add_u32 s74, s74, %d' % (WS_DBG + woff))
        for i in range(1, 12): k(f's_mov_b32 s{76+2*i}, 0')
def endpgm(k):
    if STAMPS:
        k('s_waitcnt vmcnt(0)')
        stamp(k, 11)
        k('v_mbcnt_lo_u32_b32 v0, -1, 0\nv_and_b32 v0, 15, v0\nv_lshlrev_b32 v0, 2, v0\nv_add_u32 v0, s74, v0\nv_add_u32 v0, 0x400000, v0\ns_mov_b64 exec, 0xffff')
        k(f'global_store_dword v0, v2, s[{P_WS}:{P_WS+1}]')
        k('s_waitcnt lgkmcnt(0)\nv_mov_b32 v0, s74')
        for i in range(12):
            k(f'v_mov_b32 v1, s{76+2*i}\nglobal_store_dword v0, v1, s[{P_WS}:{P_WS+1}] offset:{4*i}')
    if DBGT:
        n = int(k.name[1])
        k(f'''s_waitcnt vmcnt(0)
s_memrealtime s[78:79]
s_waitcnt lgkmcnt(0)
s_not_b32 s76, s76
s_mov_b64 exec, 1
v_mov_b32 v0, 0
v_mov_b32 v1, s76
v_mov_b32 v2, s78
global_atomic_umax v0, v1, s[{P_DBG}:{P_DBG+1}] offset:{8*n}
global_atomic_umax v0, v2, s[{P_DBG}:{P_DBG+1}] offset:{8*n+4}''')
    k('s_endpgm')

def lstamp(k, sidx):
    if STAMPS: k(f's_memrealtime s[72:73]\ns_waitcnt lgkmcnt(0)\ns_mov_b32 m0, {sidx}\nv_writelane_b32 v2, s72, m0')
```

```python
from common import *
def gen_k9(specs):
    k = Kernel('k9_kernel')
    load_ptrs(k)
    k('s_cmp_lg_u32 s2, 0\ns_cbranch_scc1 k9_exit\ns_waitcnt lgkmcnt(0)\nv_mov_b32 v9, 0')
    for n, (woff, nwg, lw) in enumerate(specs):
        tot = nwg << lw
        L = k.newlabel()
        k(f'''v_mov_b32 v1, v0
v_mov_b32 v4, 0
v_mov_b32 v5, 0
s_mov_b32 s4, {tot // 64}
{L}:
v_lshrrev_b32 v2, {lw}, v1
v_and_b32 v3, {(1 << lw) - 1}, v1
v_lshl_add_u32 v2, v2, 4, v3
v_lshlrev_b32 v2, 6, v2
v_add_u32 v2, {WS_DBG + woff}, v2
global_load_dword v6, v2, s[{P_WS}:{P_WS+1}]
global_load_dword v7, v2, s[{P_WS}:{P_WS+1}] offset:44
v_not_b32 v6, v6
v_max_u32 v4, v4, v6
v_max_u32 v5, v5, v7
v_add_u32 v1, 64, v1
s_sub_u32 s4, s4, 1
s_cmp_lg_u32 s4, 0
s_cbranch_scc1 {L}
global_atomic_umax v9, v4, s[{P_DBG}:{P_DBG+1}] offset:{8*n}
global_atomic_umax v9, v5, s[{P_DBG}:{P_DBG+1}] offset:{8*n+4}''')
    k('k9_exit:\ns_endpgm')
    return k
```

```python
import sys
from common import *
from k1 import gen_k1, L1_LDS
from k2 import gen_k2, L2_LDS
from k3 import gen_k3, L3_LDS
ref = open('concat_heads__linear_kernel_hedgehog__ssm_conv_s4__prompt.s.ref').read().split('\n')
hdr = '\n'.join(l for l in ref[:17] if l.startswith(';') and '@launch' not in l)
ks = [gen_k1(), gen_k2(), gen_k3()]
LL = [('k1_kernel', 256, 512, L1_LDS), ('k2_kernel', 768, 256, L2_LDS), ('k3_kernel', 256, 256, L3_LDS)]
if STAMPS:
    from k9 import gen_k9
    ks.append(gen_k9([(0, 256, 3), (0x40000, 768, 2), (0x100000, 256, 2)])); LL.append(('k9_kernel', 1, 64, 0))
txt = module(hdr, [(x, '') for x in ks], LL)
out = sys.argv[1] if len(sys.argv) > 1 else 'all.s'
open(out, 'w').write(txt)
for x in ks: print(x.name, x.info)
```
